```python
import torch

def _softmax(x, axis=-1):
    return torch.softmax(x, dim=axis)

def _gelu(x):
    return torch.nn.functional.gelu(x, approximate='tanh')

def _silu(x):
    return torch.nn.functional.silu(x)

def _sigmoid(x):
    return torch.sigmoid(x)

def _layernorm(x, axis=-1, eps=1e-05):
    m = x.mean(dim=axis, keepdim=True)
    v = x.var(dim=axis, keepdim=True, unbiased=False)
    return (x - m) / torch.sqrt(v + eps)

def _scatter_add(tgt, idx, src, axis=0):
    return tgt.clone().index_add_(axis, idx, src)

def _segment_sum(src, seg, n):
    out = torch.zeros((n,) + src.shape[1:], dtype=src.dtype)
    return out.index_add_(0, seg, src)

def _pad(x, pw):
    flat = tuple((v for pair in reversed(pw) for v in pair))
    return torch.nn.functional.pad(x, flat)
kernel_name = 'adaLN_cond__grouped_kv_mqa__mixer_gmlp__prompt'

def setup_inputs():

    _w = lambda a: (lambda t: t.to(torch.bfloat16) if t.is_floating_point() else t)(torch.as_tensor(a))

    def _A_setup():
        B, S, D, H = (1, 2048, 1024, 32)
        Dh = D // H
        return {'x': _w((lambda *s: torch.randn(*s, dtype=torch.bfloat16) * 0.05)(B, S, D)), 'wq': _w((lambda *s: torch.randn(*s, dtype=torch.bfloat16) * 0.05)(D, H * Dh)), 'wk': _w((lambda *s: torch.randn(*s, dtype=torch.bfloat16) * 0.05)(D, Dh)), 'wv': _w((lambda *s: torch.randn(*s, dtype=torch.bfloat16) * 0.05)(D, Dh)), 'wo': _w((lambda *s: torch.randn(*s, dtype=torch.bfloat16) * 0.05)(H * Dh, D))}
    _A_in = _A_setup()

    def _B_setup():
        B, S, D, F = (1, 2048, 1024, 3584)
        Fh = F // 2
        return {'x': _w((lambda *s: torch.randn(*s, dtype=torch.bfloat16) * 0.05)(B, S, D)), 'w_in': _w((lambda *s: torch.randn(*s, dtype=torch.bfloat16) * 0.8)(D, 2 * Fh)), 'w_sp': _w(0.01 * (lambda *s: torch.randn(*s, dtype=torch.bfloat16) * 0.8)(S, S)), 'b_sp': _w(1.0 + 0.01 * (lambda *s: torch.randn(*s, dtype=torch.bfloat16) * 0.05)(S)), 'w_out': _w((lambda *s: torch.randn(*s, dtype=torch.bfloat16) * 0.05)(Fh, D))}
    _B_in = _B_setup()
    return {'A_x': _A_in['x'], 'A_wq': _A_in['wq'], 'A_wk': _A_in['wk'], 'A_wv': _A_in['wv'], 'A_wo': _A_in['wo'], 'B_x': _B_in['x'], 'B_w_in': _B_in['w_in'], 'B_w_sp': _B_in['w_sp'], 'B_b_sp': _B_in['b_sp'], 'B_w_out': _B_in['w_out'], 'c': _w((lambda *s: torch.randn(*s, dtype=torch.bfloat16) * 0.1)(1, 1024) * 8.0), 'w_mod': _w((lambda *s: torch.randn(*s, dtype=torch.bfloat16) * 0.1)(1024, 6 * 1024) * 1024 ** (-0.5) * 8.0)}

def reference(A_x, A_wq, A_wk, A_wv, A_wo, B_x, B_w_in, B_w_sp, B_b_sp, B_w_out, c, w_mod):

    def _A_ref(x, wq, wk, wv, wo):
        B, S, D = x.shape
        H = 32
        Dh = D // H
        q = (lambda x, *d: x.permute(*d))((x @ wq).reshape(B, S, H, Dh), 0, 2, 1, 3)
        k = x @ wk
        v = x @ wv
        scores = torch.einsum('bhqd,bkd->bhqk', q, k) * Dh ** (-0.5)
        p = _softmax(scores, axis=-1)
        o = torch.einsum('bhqk,bkd->bhqd', p, v)
        return (lambda x, *d: x.permute(*d))(o, 0, 2, 1, 3).reshape(B, S, H * Dh) @ wo

    def _B_ref(x, w_in, w_sp, b_sp, w_out):
        B, S, D = x.shape
        F = w_in.shape[-1]
        Fh = F // 2
        z = _gelu(torch.einsum('bsd,df->bsf', x, w_in))
        z1 = z[..., :Fh].clone()
        z2 = _layernorm(z[..., Fh:], axis=-1)
        g = torch.einsum('ts,bsf->btf', w_sp, z2) + b_sp[None, :, None]
        return torch.einsum('bsf,fd->bsd', z1 * g, w_out)
    x = A_x
    mod = (_silu(c) @ w_mod).reshape(c.shape[0], 6, 1, -1)
    sa, ca, ga, sb, cb, gb = (mod[:, 0].clone(), mod[:, 1].clone(), mod[:, 2].clone(), mod[:, 3].clone(), mod[:, 4].clone(), mod[:, 5].clone())
    h = _layernorm(x, axis=-1) * (1 + ca) + sa
    x = x + ga * _A_ref(h, A_wq, A_wk, A_wv, A_wo)
    h = _layernorm(x, axis=-1) * (1 + cb) + sb
    x = x + gb * _B_ref(h, B_w_in, B_w_sp, B_b_sp, B_w_out)
    return x
```

```python
class Stream:
    def __init__(self):
        self.L = []
        self.vm = []
        self.lg = []

    def __call__(self, txt):
        for line in txt.split("\n"):
            line = line.strip()
            if line:
                self.L.append("    " + line)

    def label(self, name):
        self.L.append(name + ":")

    def raw(self, txt):
        self.L.append(txt)

    def vmop(self, txt, tag=None):
        self(txt)
        self.vm.append(tag)
        assert len(self.vm) <= 63, "too many vector-memory operations in flight"

    def lgop(self, txt, tag=None):
        self(txt)
        self.lg.append(tag)

    @staticmethod
    def _need(q, tags):
        idx = -1
        for i, t in enumerate(q):
            if t in tags:
                idx = i
        return idx

    def wait(self, vm=(), lg=()):
        parts = []
        iv = self._need(self.vm, set(vm))
        if iv >= 0:
            parts.append(f"vmcnt({len(self.vm) - 1 - iv})")
            self.vm = self.vm[iv + 1:]
        il = self._need(self.lg, set(lg))
        if il >= 0:
            n = min(len(self.lg) - 1 - il, 15)
            parts.append(f"lgkmcnt({n})")
            self.lg = self.lg[len(self.lg) - n:] if n else []
        if parts:
            self("s_waitcnt " + " ".join(parts))

    def wait_all(self, vm=True, lg=True):
        parts = []
        if vm:
            parts.append("vmcnt(0)")
            self.vm = []
        if lg:
            parts.append("lgkmcnt(0)")
            self.lg = []
        self("s_waitcnt " + " ".join(parts))

    def mark(self):
        return len(self.L)

    def fold(self, marks, counter, name):
        per = [self.L[marks[i]:marks[i + 1]] for i in range(len(marks) - 1)]
        best = (0, 1)
        i = 0
        while i < len(per):
            k = i
            while k + 1 < len(per) and per[k + 1] == per[i]:
                k += 1
            if k - i + 1 > best[1]:
                best = (i, k - i + 1)
            i = k + 1
        s, n = best
        if n < 2:
            return 1
        body = per[s]
        new = [f"    s_mov_b32 {counter}, {n}", f"{name}:"] + body + [
            f"    s_sub_u32 {counter}, {counter}, 1",
            f"    s_cmp_lg_u32 {counter}, 0",
            f"    s_cbranch_scc1 {name}",
        ]
        self.L[marks[s]:marks[s + n]] = new
        return n

    def text(self):
        return "\n".join(self.L) + "\n"


def vr(base, n=1):
    return f"v{base}" if n == 1 else f"v[{base}:{base + n - 1}]"


def sr(base, n=1):
    return f"s{base}" if n == 1 else f"s[{base}:{base + n - 1}]"


def f2u(x):
    import struct
    return struct.unpack("<I", struct.pack("<f", x))[0]


def hexf(x):
    return f"0x{f2u(x):08x}"
```

```python
import math
import sys
from asmlib import Stream, vr, sr, hexf

NAME = "adaLN_cond__grouped_kv_mqa__mixer_gmlp__prompt"

MB = 1 << 20
WS_MODP = 0
WS_MODF = 0x20000
WS_MODB = 0x28000
WS_C12 = 0x30000
WS_KV = 0x80000
WS_ST1 = 0x100000
WS_ST2 = 0x180000
WS_H = 2 * MB
WS_O = 6 * MB
WS_X1P = 10 * MB
WS_X1R = 14 * MB
WS_WINF = 18 * MB
WS_Z1 = 26 * MB
WS_Z2T = 34 * MB
WS_U = 42 * MB
WS_SIZE = 0x10000000
OOB = 0x20000000

R_WS, R_X, R_WQ, R_WO, R_WIN, R_WSP, R_WOUT, R_OUT, R_AUX = 4, 8, 12, 16, 20, 24, 28, 32, 36
sT, sJ, sW8, sW, sTB = "s40", "s41", "s42", "s43", "s44"
P_X, P_WQ, P_WK, P_WV, P_WO, P_WIN, P_WSP = 64, 66, 68, 70, 72, 76, 78
P_BSP, P_WOUT, P_C, P_WMOD, P_OUT, P_DBG, P_WS = 80, 82, 84, 86, 88, 90, 92
ST = "sc1"


def srd(S, dst, ptr, size):
    S(f"s_mov_b32 s{dst}, s{ptr}")
    S(f"s_mov_b32 s{dst + 1}, s{ptr + 1}")
    S(f"s_mov_b32 s{dst + 2}, {size:#x}")
    S(f"s_mov_b32 s{dst + 3}, 0x00020000")


def prologue(S, name, nwg):
    S.raw(f".globl {name}\n.p2align 8\n.type {name},@function\n{name}:")
    S(f"s_cmp_ge_u32 s2, {nwg}")
    S(f"s_cbranch_scc1 {name}_end")
    S("s_load_dwordx16 s[64:79], s[0:1], 0")
    S("s_load_dwordx8 s[80:87], s[0:1], 64")
    S("s_load_dwordx4 s[88:91], s[0:1], 96")
    S("s_load_dwordx2 s[92:93], s[0:1], 112")
    S("v_lshrrev_b32 v1, 6, v0")
    S("v_mov_b32 v2, v0")
    S(f"v_readfirstlane_b32 {sW8}, v1")
    S("v_and_b32 v0, 63, v0")
    S("s_and_b32 s45, s2, 7")
    S("s_lshr_b32 s46, s2, 3")
    S("s_lshr_b32 s47, s45, 1")
    S("s_lshl_b32 s47, s47, 2")
    S("s_lshr_b32 s48, s46, 3")
    S(f"s_add_u32 {sT}, s47, s48")
    S("s_and_b32 s47, s45, 1")
    S("s_lshl_b32 s47, s47, 3")
    S("s_and_b32 s48, s46, 7")
    S(f"s_add_u32 {sJ}, s47, s48")
    S(f"s_and_b32 {sW}, {sW8}, 3")
    S(f"s_lshl_b32 {sTB}, {sT}, 2")
    S(f"s_add_u32 {sTB}, {sTB}, {sW}")
    S("s_waitcnt lgkmcnt(0)")
    srd(S, R_WS, P_WS, WS_SIZE)


def finish(S, name):
    S.label(f"{name}_end")
    S("s_endpgm")


def descriptor(name, nv=256):
    return f""".amdhsa_kernel {name}
  .amdhsa_next_free_vgpr {nv}
  .amdhsa_next_free_sgpr 102
  .amdhsa_accum_offset {nv}
  .amdhsa_group_segment_fixed_size 0
  .amdhsa_kernarg_size 120
  .amdhsa_user_sgpr_count 2
  .amdhsa_user_sgpr_kernarg_segment_ptr 1
  .amdhsa_system_sgpr_workgroup_id_x 1
.end_amdhsa_kernel
"""


def mfma16(d, a, b, c):
    cs = "0" if c is None else vr(c, 4)
    return f"v_mfma_f32_16x16x32_bf16 {vr(d, 4)}, {vr(a, 4)}, {vr(b, 4)}, {cs}"


def xreduce(S, s, t, which):
    S(f"v_mov_b32 v{t}, v{s}")
    S("s_nop 1")
    S(f"v_permlane{which}_swap_b32 v{s}, v{t}")
    S(f"v_add_f32 v{s}, v{s}, v{t}")


def tau(S, dst, src, tmp):
    S(f"v_and_b32 v{dst}, 12, v{src}")
    S(f"v_lshlrev_b32 v{dst}, 1, v{dst}")
    S(f"v_and_b32 v{tmp}, 16, v{src}")
    S(f"v_lshrrev_b32 v{tmp}, 2, v{tmp}")
    S(f"v_or_b32 v{dst}, v{dst}, v{tmp}")
    S(f"v_and_b32 v{tmp}, 3, v{src}")
    S(f"v_or_b32 v{dst}, v{dst}, v{tmp}")


def k_mod(name):
    S = Stream()
    prologue(S, name, 384)
    srd(S, R_X, P_WMOD, 1024 * 12288)
    srd(S, R_AUX, P_C, 2048)
    S("s_lshr_b32 s45, s2, 2")
    S("s_and_b32 s46, s2, 3")
    S("v_lshrrev_b32 v3, 3, v2")
    S("v_and_b32 v4, 7, v2")
    S("s_mov_b32 s47, 12288")
    S("v_mul_lo_u32 v5, v3, s47")
    S("v_lshl_add_u32 v5, v4, 4, v5")
    S("v_lshlrev_b32 v6, 1, v3")
    S(f"s_mul_i32 s47, s46, {256 * 12288}")
    S("s_lshl_b32 s48, s45, 7")
    S("s_add_u32 s47, s47, s48")
    S("s_lshl_b32 s48, s46, 9")
    for p in range(4):
        S.vmop(f"buffer_load_ushort v{8 + p}, v6, s[{R_AUX}:{R_AUX + 3}], s48 offen offset:{p * 128}", "c")
    for p in range(4):
        S.vmop(f"buffer_load_dwordx4 {vr(16 + 4 * p, 4)}, v5, s[{R_X}:{R_X + 3}], s47 offen", f"w{p}")
        if p < 3:
            S(f"s_add_u32 s47, s47, {64 * 12288}")
    S.wait(vm=["c"])
    for p in range(4):
        S(f"v_lshlrev_b32 v{8 + p}, 16, v{8 + p}")
    for p in range(4):
        S(f"v_mul_f32 v{12 + p}, {hexf(-math.log2(math.e))}, v{8 + p}")
    for p in range(4):
        S(f"v_exp_f32 v{12 + p}, v{12 + p}")
    for p in range(4):
        S(f"v_add_f32 v{12 + p}, 1.0, v{12 + p}")
    for p in range(4):
        S(f"v_rcp_f32 v{12 + p}, v{12 + p}")
    for p in range(4):
        S(f"v_mul_f32 v{8 + p}, v{8 + p}, v{12 + p}")
    for p in range(4):
        S(f"v_cvt_pk_bf16_f32 v{8 + p}, v{8 + p}, v{8 + p}")
    for p in range(4):
        S(f"v_lshlrev_b32 v{8 + p}, 16, v{8 + p}")
    A = 32
    for p in range(4):
        S.wait(vm=[f"w{p}"])
        for d in range(4):
            S(f"v_lshlrev_b32 v40, 16, v{16 + 4 * p + d}")
            S(f"v_and_b32 v41, 0xffff0000, v{16 + 4 * p + d}")
            if p == 0:
                S(f"v_mul_f32 v{A + 2 * d}, v40, v8")
                S(f"v_mul_f32 v{A + 2 * d + 1}, v41, v8")
            else:
                S(f"v_fmac_f32 v{A + 2 * d}, v40, v{8 + p}")
                S(f"v_fmac_f32 v{A + 2 * d + 1}, v41, v{8 + p}")
    S("s_nop 1")
    for m in range(4):
        S(f"v_permlane32_swap_b32 v{A + 2 * m}, v{A + 2 * m + 1}")
    for m in range(4):
        S(f"v_add_f32 v{A + 2 * m}, v{A + 2 * m}, v{A + 2 * m + 1}")
    S("s_nop 1")
    S(f"v_permlane16_swap_b32 v{A}, v{A + 2}")
    S(f"v_permlane16_swap_b32 v{A + 4}, v{A + 6}")
    S(f"v_add_f32 v{A}, v{A}, v{A + 2}")
    S(f"v_add_f32 v{A + 4}, v{A + 4}, v{A + 6}")
    S("s_nop 1")
    S(f"v_add_f32_dpp v{A + 1}, v{A}, v{A} row_ror:8 row_mask:0xf bank_mask:0xf")
    S(f"v_add_f32_dpp v{A + 5}, v{A + 4}, v{A + 4} row_ror:8 row_mask:0xf bank_mask:0xf")
    S("v_lshlrev_b32 v7, 5, v4")
    S("v_bfe_u32 v40, v0, 4, 1")
    S("v_lshl_add_u32 v7, v40, 3, v7")
    S("v_lshrrev_b32 v40, 5, v0")
    S("v_lshl_add_u32 v7, v40, 2, v7")
    S("v_lshl_add_u32 v7, v1, 8, v7")
    S(f"ds_write_b32 v7, v{A + 1}")
    S(f"ds_write_b32 v7, v{A + 5} offset:16")
    S("s_cmp_ge_u32 s2, 32")
    S(f"s_cbranch_scc1 {name}_nofill")
    for i in range(4):
        S(f"v_mov_b32 v{44 + i}, -1")
    S("v_lshlrev_b32 v48, 4, v2")
    S("s_lshl_b32 s47, s2, 13")
    S(f"s_add_u32 s47, s47, {WS_ST2}")
    S(f"buffer_store_dwordx4 v[44:47], v48, s[{R_WS}:{R_WS + 3}], s47 offen {ST}")
    S.label(f"{name}_nofill")
    S("s_waitcnt lgkmcnt(0)")
    S("s_barrier")
    S(f"s_cmp_lg_u32 {sW8}, 0")
    S(f"s_cbranch_scc1 {name}_end")
    S("v_lshlrev_b32 v7, 2, v0")
    for w in range(8):
        S(f"ds_read_b32 v{16 + w}, v7 offset:{w * 256}")
    S("s_waitcnt lgkmcnt(0)")
    for w in range(1, 8):
        S(f"v_add_f32 v16, v16, v{16 + w}")
    S("s_mul_i32 s47, s46, 24576")
    S("s_lshl_b32 s48, s45, 8")
    S("s_add_u32 s47, s47, s48")
    S(f"buffer_store_dword v16, v7, s[{R_WS}:{R_WS + 3}], s47 offen {ST}")
    finish(S, name)
    return S


def round_bf16_quad(S, v):
    S(f"v_cvt_pk_bf16_f32 v{v}, v{v}, v{v + 1}")
    S(f"v_cvt_pk_bf16_f32 v{v + 2}, v{v + 2}, v{v + 3}")
    S(f"v_and_b32 v{v + 1}, 0xffff0000, v{v}")
    S(f"v_lshlrev_b32 v{v}, 16, v{v}")
    S(f"v_and_b32 v{v + 3}, 0xffff0000, v{v + 2}")
    S(f"v_lshlrev_b32 v{v + 2}, 16, v{v + 2}")


def k_ln1(name):
    S = Stream()
    L_W, L_MOD, L_RED, L_PART = 0, 65536, 65536 + 8192, 65536 + 8192 + 1024
    prologue(S, name, 256)
    srd(S, R_X, P_X, 2048 * 2048)
    S("s_bfe_u32 s50, s2, 0x10003")
    S("s_and_b32 s45, s2, 7")
    S("s_lshr_b32 s46, s2, 4")
    S("s_lshl_b32 s46, s46, 3")
    S("s_add_u32 s45, s45, s46")
    S("s_lshr_b32 s51, s45, 1")
    S("s_and_b32 s52, s45, 1")
    S("s_cmp_eq_u32 s50, 0")
    S(f"s_cselect_b32 s{R_AUX}, s{P_WK}, s{P_WV}")
    S(f"s_cselect_b32 s{R_AUX + 1}, s{P_WK + 1}, s{P_WV + 1}")
    S(f"s_mov_b32 s{R_AUX + 2}, 65536")
    S(f"s_mov_b32 s{R_AUX + 3}, 0x00020000")
    S("v_and_b32 v3, 15, v0")
    S("v_lshrrev_b32 v4, 4, v0")
    tau(S, 5, 3, 6)
    S("v_lshlrev_b32 v5, 11, v5")
    S("v_lshl_add_u32 v5, v4, 4, v5")
    S("s_lshl_b32 s47, s51, 16")
    S("s_lshl_b32 s48, s52, 13")
    S("s_add_u32 s47, s47, s48")
    S(f"s_lshl_b32 s48, {sW8}, 8")
    S("s_add_u32 s47, s47, s48")
    for s in range(4):
        S.vmop(f"buffer_load_dwordx4 {vr(16 + 4 * s, 4)}, v5, s[{R_X}:{R_X + 3}], s47 offen offset:{s * 64}", "x")
    S("v_lshlrev_b32 v6, 4, v2")
    for ks in range(4):
        S(f"s_mov_b32 s47, {WS_MODP + ks * 24576}")
        S.vmop(f"buffer_load_dwordx4 {vr(32 + 4 * ks, 4)}, v6, s[{R_WS}:{R_WS + 3}], s47 offen", "m")
    S("v_lshlrev_b32 v7, 4, v0")
    S(f"s_lshl_b32 s47, {sW8}, 13")
    for g in range(2):
        S("s_mov_b32 m0, s47")
        S("s_nop 0")
        for i in range(4):
            S.vmop(f"buffer_load_dwordx4 v7, s[{R_AUX}:{R_AUX + 3}], s47 offen offset:{i * 1024} lds", "w")
        if g == 0:
            S("s_add_u32 s47, s47, 4096")
    X = 48
    S.wait(vm=["x"])
    for d in range(16):
        S(f"v_lshlrev_b32 v{X + 2 * d}, 16, v{16 + d}")
        S(f"v_and_b32 v{X + 2 * d + 1}, 0xffff0000, v{16 + d}")
    S(f"v_pk_add_f32 v[8:9], {vr(X, 2)}, {vr(X + 2, 2)}")
    S(f"v_pk_add_f32 v[10:11], {vr(X + 4, 2)}, {vr(X + 6, 2)}")
    for d in range(4, 16, 2):
        S(f"v_pk_add_f32 v[8:9], v[8:9], {vr(X + 2 * d, 2)}")
        S(f"v_pk_add_f32 v[10:11], v[10:11], {vr(X + 2 * d + 2, 2)}")
    S("v_pk_add_f32 v[8:9], v[8:9], v[10:11]")
    S("v_add_f32 v8, v8, v9")
    xreduce(S, 8, 9, 16)
    xreduce(S, 8, 9, 32)
    S(f"v_mul_f32 v8, {hexf(1.0 / 128)}, v8")
    for d in range(16):
        t = 16 + 2 * (d % 4)
        S(f"v_pk_add_f32 {vr(t, 2)}, {vr(X + 2 * d, 2)}, v[8:9] op_sel_hi:[1,0] neg_lo:[0,1] neg_hi:[0,1]")
        acc = 10 + 2 * (d % 2)
        if d < 2:
            S(f"v_pk_mul_f32 {vr(acc, 2)}, {vr(t, 2)}, {vr(t, 2)}")
        else:
            S(f"v_pk_fma_f32 {vr(acc, 2)}, {vr(t, 2)}, {vr(t, 2)}, {vr(acc, 2)}")
    S("v_pk_add_f32 v[10:11], v[10:11], v[12:13]")
    S("v_add_f32 v9, v10, v11")
    xreduce(S, 9, 10, 16)
    xreduce(S, 9, 10, 32)
    S("v_lshlrev_b32 v10, 6, v3")
    S(f"v_add_u32 v10, {L_RED}, v10")
    S("v_lshl_add_u32 v11, v1, 3, v10")
    S.lgop("ds_write_b64 v11, v[8:9]")
    S.wait(vm=["m"])
    for ks in range(1, 4):
        S(f"v_pk_add_f32 v[32:33], v[32:33], {vr(32 + 4 * ks, 2)}")
        S(f"v_pk_add_f32 v[34:35], v[34:35], {vr(34 + 4 * ks, 2)}")
    round_bf16_quad(S, 32)
    S(f"s_cmp_lt_u32 {sW8}, 4")
    S(f"s_cbranch_scc1 {name}_isa")
    for i in range(4):
        S(f"v_add_f32 v{32 + i}, 1.0, v{32 + i}")
    round_bf16_quad(S, 32)
    S.label(f"{name}_isa")
    S(f"v_add_u32 v11, {L_MOD}, v6")
    S.lgop("ds_write_b128 v11, v[32:35]")
    S.wait_all(vm=False)
    S("s_barrier")
    for i in range(4):
        S.lgop(f"ds_read_b128 {vr(16 + 4 * i, 4)}, v10 offset:{16 * i}", "red")
    S("v_lshlrev_b32 v11, 5, v4")
    S("v_lshl_add_u32 v11, v1, 9, v11")
    S(f"v_add_u32 v11, {L_MOD}, v11")
    SA, CA = 80, 112
    for s in range(4):
        for hh in range(2):
            S.lgop(f"ds_read_b128 {vr(SA + 8 * s + 4 * hh, 4)}, v11 offset:{s * 128 + hh * 16}", f"mv{s}")
            S.lgop(f"ds_read_b128 {vr(CA + 8 * s + 4 * hh, 4)}, v11 offset:{4096 + s * 128 + hh * 16}", f"mv{s}")
    S.wait(lg=["red"])
    S("v_pk_add_f32 v[8:9], v[16:17], v[18:19]")
    for w in range(2, 8):
        S(f"v_pk_add_f32 v[8:9], v[8:9], {vr(16 + 2 * w, 2)}")
    S("v_mul_f32 v8, 0x3e000000, v8")
    S("v_mov_b32 v12, 0")
    for w in range(8):
        S(f"v_sub_f32 v13, v{16 + 2 * w}, v8")
        S("v_fmac_f32 v12, v13, v13")
    S("v_fmac_f32 v9, 0x43000000, v12")
    S(f"v_mov_b32 v12, {hexf(1e-5)}")
    S(f"v_fmac_f32 v12, {hexf(1.0 / 1024)}, v9")
    S("v_rsq_f32 v12, v12")
    S("s_nop 0")
    S("v_mul_f32 v13, v8, v12")
    S("v_sub_f32 v13, 0, v13")
    H = 16
    for s in range(4):
        S.wait(lg=[f"mv{s}"])
        for d in range(4):
            x = X + 8 * s + 2 * d
            S(f"v_pk_fma_f32 {vr(x, 2)}, {vr(x, 2)}, v[12:13], v[12:13] op_sel:[0,0,1] op_sel_hi:[1,0,1]")
        for d in range(4):
            x = X + 8 * s + 2 * d
            S(f"v_pk_fma_f32 {vr(x, 2)}, {vr(x, 2)}, {vr(CA + 8 * s + 2 * d, 2)}, {vr(SA + 8 * s + 2 * d, 2)}")
        for d in range(4):
            x = X + 8 * s + 2 * d
            S(f"v_cvt_pk_bf16_f32 v{H + 4 * s + d}, v{x}, v{x + 1}")
    S("v_lshlrev_b32 v14, 9, v4")
    S("v_lshl_add_u32 v14, v3, 4, v14")
    S("s_lshl_b32 s47, s51, 16")
    S("s_lshl_b32 s48, s52, 8")
    S("s_add_u32 s47, s47, s48")
    S(f"s_lshl_b32 s48, {sW8}, 13")
    S("s_add_u32 s47, s47, s48")
    S(f"s_add_u32 s47, s47, {WS_H}")
    S("v_bfe_u32 v15, v0, 2, 2")
    S("v_lshl_add_u32 v15, v4, 3, v15")
    S("v_lshlrev_b32 v15, 6, v15")
    S("v_and_b32 v32, 3, v0")
    S("v_lshl_add_u32 v15, v32, 3, v15")
    S("v_lshl_add_u32 v15, v1, 13, v15")
    S.wait(vm=["w"])
    WF = 48
    for s in range(4):
        for n in range(2):
            d = WF + 8 * s + 4 * n
            S.lgop(f"ds_read_b64_tr_b16 {vr(d, 2)}, v15 offset:{s * 2048 + n * 32}")
            S.lgop(f"ds_read_b64_tr_b16 {vr(d + 2, 2)}, v15 offset:{s * 2048 + n * 32 + 256}")
    S.wait_all(vm=False)
    ACC = 32
    S("s_cmp_eq_u32 s50, 0")
    S(f"s_cbranch_scc0 {name}_v")
    for s in range(2):
        S(f"buffer_store_dwordx4 {vr(H + 4 * s, 4)}, v14, s[{R_WS}:{R_WS + 3}], s47 offen offset:{s * 2048} {ST}")
    for s in range(4):
        for n in range(2):
            S(mfma16(ACC + 4 * n, WF + 8 * s + 4 * n, H + 4 * s, None if s == 0 else ACC + 4 * n))
    S(f"s_branch {name}_kv")
    S.label(f"{name}_v")
    S("s_add_u32 s47, s47, 4096")
    for s in range(2):
        S(f"buffer_store_dwordx4 {vr(H + 8 + 4 * s, 4)}, v14, s[{R_WS}:{R_WS + 3}], s47 offen offset:{s * 2048} {ST}")
    for s in range(4):
        for n in range(2):
            S(mfma16(ACC + 4 * n, H + 4 * s, WF + 8 * s + 4 * n, None if s == 0 else ACC + 4 * n))
    S.label(f"{name}_kv")
    S("v_lshl_add_u32 v10, v1, 11, v7")
    S(f"v_add_u32 v10, {L_PART}, v10")
    S("s_nop 7")
    S(f"ds_write_b128 v10, {vr(ACC, 4)}")
    S(f"ds_write_b128 v10, {vr(ACC + 4, 4)} offset:1024")
    S("s_waitcnt lgkmcnt(0)")
    S("s_barrier")
    S(f"s_cmp_ge_u32 {sW8}, 2")
    S(f"s_cbranch_scc1 {name}_fin")
    S("v_lshl_add_u32 v10, v1, 10, v7")
    S(f"v_add_u32 v10, {L_PART}, v10")
    for w in range(8):
        S(f"ds_read_b128 {vr(48 + 4 * w, 4)}, v10 offset:{w * 2048}")
    S("v_lshrrev_b32 v11, 1, v4")
    S("v_and_b32 v12, 1, v4")
    S("s_lshl_b32 s47, s51, 12")
    S(f"s_add_u32 s47, s47, {WS_KV}")
    S("s_cmp_eq_u32 s50, 0")
    S(f"s_cbranch_scc0 {name}_va")
    S("v_lshl_add_u32 v13, v1, 1, v11")
    S("v_lshlrev_b32 v13, 9, v13")
    S("v_lshl_add_u32 v13, v3, 4, v13")
    S("s_lshl_b32 s48, s52, 8")
    S(f"s_branch {name}_ad")
    S.label(f"{name}_va")
    S("v_and_b32 v13, 3, v3")
    S("v_bfe_u32 v14, v3, 2, 1")
    S("v_lshl_add_u32 v13, v14, 3, v13")
    S("v_bfe_u32 v14, v3, 3, 1")
    S("v_lshl_add_u32 v13, v14, 2, v13")
    S("v_lshl_add_u32 v13, v1, 4, v13")
    S("v_lshl_add_u32 v13, v11, 5, v13")
    S("v_lshlrev_b32 v13, 4, v13")
    S("s_lshl_b32 s48, s52, 10")
    S("s_add_u32 s48, s48, 2048")
    S.label(f"{name}_ad")
    S("v_lshl_add_u32 v13, v12, 3, v13")
    S("s_add_u32 s47, s47, s48")
    S("s_waitcnt lgkmcnt(0)")
    for w in range(1, 8):
        S(f"v_pk_add_f32 v[48:49], v[48:49], {vr(48 + 4 * w, 2)}")
        S(f"v_pk_add_f32 v[50:51], v[50:51], {vr(50 + 4 * w, 2)}")
    S("v_cvt_pk_bf16_f32 v48, v48, v49")
    S("v_cvt_pk_bf16_f32 v49, v50, v51")
    S(f"buffer_store_dwordx2 v[48:49], v13, s[{R_WS}:{R_WS + 3}], s47 offen {ST}")
    S.label(f"{name}_fin")
    S("s_sub_u32 s45, s2, 1")
    S("s_cmp_ge_u32 s45, 2")
    S(f"s_cbranch_scc1 {name}_end")
    S("s_lshl_b32 s46, s2, 13")
    for ks in range(4):
        S(f"s_add_u32 s47, s46, {WS_MODP + ks * 24576}")
        S(f"buffer_load_dwordx4 {vr(32 + 4 * ks, 4)}, v6, s[{R_WS}:{R_WS + 3}], s47 offen")
    S("s_waitcnt vmcnt(0)")
    for ks in range(1, 4):
        S(f"v_pk_add_f32 v[32:33], v[32:33], {vr(32 + 4 * ks, 2)}")
        S(f"v_pk_add_f32 v[34:35], v[34:35], {vr(34 + 4 * ks, 2)}")
    round_bf16_quad(S, 32)
    S(f"s_lshr_b32 s48, {sW8}, 2")
    S("s_lshl_b32 s49, s2, 1")
    S("s_add_u32 s48, s48, s49")
    S("s_cmp_lg_u32 s48, 4")
    S(f"s_cbranch_scc1 {name}_ncb")
    for i in range(4):
        S(f"v_add_f32 v{32 + i}, 1.0, v{32 + i}")
    round_bf16_quad(S, 32)
    S.label(f"{name}_ncb")
    S(f"s_add_u32 s47, s46, {WS_MODF}")
    S(f"buffer_store_dwordx4 v[32:35], v6, s[{R_WS}:{R_WS + 3}], s47 offen {ST}")
    S("s_sub_u32 s49, 4, s48")
    S("s_cmp_ge_u32 s49, 2")
    S(f"s_cbranch_scc1 {name}_end")
    S("v_cvt_pk_bf16_f32 v36, v32, v33")
    S("v_cvt_pk_bf16_f32 v37, v34, v35")
    S("v_and_b32 v38, 255, v2")
    S("v_lshlrev_b32 v38, 3, v38")
    S("s_lshl_b32 s49, s49, 11")
    S(f"s_add_u32 s49, s49, {WS_MODB}")
    S(f"buffer_store_dwordx2 v[36:37], v38, s[{R_WS}:{R_WS + 3}], s49 offen {ST}")
    finish(S, name)
    return S


def tr_dma_addr(S, vb, rowstride, t0, t1):
    S(f"v_lshrrev_b32 v{t0}, 3, v0")
    S(f"s_mov_b32 s45, {rowstride}")
    S(f"v_mul_lo_u32 v{vb}, v{t0}, s45")
    S(f"v_and_b32 v{t0}, 2, v{t0}")
    S(f"v_and_b32 v{t1}, 7, v0")
    S(f"v_xor_b32 v{t0}, v{t0}, v{t1}")
    S(f"v_xor_b32 v{t1}, 4, v{t0}")
    S(f"v_lshl_add_u32 v{vb + 1}, v{t1}, 4, v{vb}")
    S(f"v_lshl_add_u32 v{vb}, v{t0}, 4, v{vb}")
    S(f"v_add_u32 v{vb + 1}, {8 * rowstride - 1024}, v{vb + 1}")
    S(f"v_add_u32 v{vb + 2}, {16 * rowstride - 2048}, v{vb}")
    S(f"v_add_u32 v{vb + 3}, {16 * rowstride - 2048}, v{vb + 1}")


def tr_read_addr(S, vb, nwin, t0, t1, base=0):
    S(f"v_lshrrev_b32 v{t0}, 4, v0")
    S(f"v_bfe_u32 v{t1}, v0, 2, 2")
    S(f"v_lshl_add_u32 v{vb}, v{t0}, 3, v{t1}")
    S(f"v_lshlrev_b32 v{vb}, 7, v{vb}")
    S(f"v_and_b32 v{t0}, 1, v{t0}")
    S(f"v_lshrrev_b32 v{t1}, 1, v{t1}")
    S(f"v_lshl_add_u32 v{t0}, v{t0}, 1, v{t1}")
    S(f"v_and_b32 v{t1}, 3, v0")
    S(f"v_lshl_add_u32 v{vb}, v{t1}, 3, v{vb}")
    if base:
        S(f"v_add_u32 v{vb}, {base}, v{vb}")
    for n in (3, 2, 1, 0):
        S(f"v_xor_b32 v{t1}, {n}, v{t0}")
        S(f"v_lshl_add_u32 v{vb + n}, v{t1}, 5, v{vb}")
    for w in range(1, nwin):
        for n in range(4):
            S(f"v_add_u32 v{vb + 4 * w + n}, {65536 * w}, v{vb + n}")


def k_pw(name):
    S = Stream()
    prologue(S, name, 224)
    srd(S, R_WIN, P_WIN, 1024 * 7168)
    S("s_lshr_b32 s50, s2, 2")
    S("s_and_b32 s51, s2, 3")
    tr_dma_addr(S, 4, 7168, 8, 9)
    S(f"s_lshl_b32 s46, s51, 2")
    S(f"s_add_u32 s46, s46, {sW}")
    S(f"s_mul_i32 s46, s46, {64 * 7168}")
    S("s_lshl_b32 s47, s50, 7")
    S("s_add_u32 s46, s46, s47")
    S(f"s_lshl_b32 s47, {sW}, 13")
    for g in range(2):
        S("s_mov_b32 m0, s47")
        S("s_nop 0")
        for i in range(4):
            S.vmop(f"buffer_load_dwordx4 v{4 + i}, s[{R_WIN}:{R_WIN + 3}], s46 offen offset:{i * 1024} lds", "w")
        if g == 0:
            S(f"s_add_u32 s46, s46, {32 * 7168}")
            S("s_add_u32 s47, s47, 4096")
    S("v_and_b32 v8, 15, v0")
    S("v_lshrrev_b32 v9, 4, v0")
    S("v_lshlrev_b32 v10, 11, v8")
    S("v_lshl_add_u32 v10, v9, 4, v10")
    S("v_cmp_gt_u32 vcc, 2, v8")
    S(f"v_mov_b32 v11, {OOB}")
    S("s_nop 0")
    S("v_cndmask_b32 v10, v11, v10, vcc")
    S("s_mov_b32 s45, 14336")
    S("v_mul_lo_u32 v16, v8, s45")
    S("v_lshl_add_u32 v16, v9, 4, v16")
    S("v_cndmask_b32 v16, v11, v16, vcc")
    S("s_lshl_b32 s46, s51, 9")
    S(f"s_add_u32 s46, s46, {WS_MODB}")
    for s in range(8):
        S.vmop(f"buffer_load_dwordx4 {vr(64 + 4 * s, 4)}, v10, s[{R_WS}:{R_WS + 3}], s46 offen offset:{s * 64}", "vec")
    tr_read_addr(S, 12, 1, 8, 9)
    for n in range(1, 4):
        S(f"s_cmp_eq_u32 {sW}, {n}")
        S("s_cselect_b64 vcc, -1, 0")
        S(f"v_cndmask_b32 v12, v12, v{12 + n}, vcc")
    S("s_lshl_b32 s52, s50, 2")
    S(f"s_add_u32 s52, s52, {sW}")
    S("s_cmp_ge_u32 s52, 112")
    S("s_cselect_b32 s53, 112, 0")
    S("s_cselect_b32 s54, 7, 0")
    S("s_sub_u32 s53, s52, s53")
    S("s_mul_i32 s55, s53, 9363")
    S("s_lshr_b32 s55, s55, 16")
    S("s_mul_i32 s56, s55, 7")
    S("s_sub_u32 s53, s53, s56")
    S("s_add_u32 s53, s53, s54")
    S("s_lshl_b32 s55, s55, 5")
    S("s_lshl_b32 s56, s51, 3")
    S("s_add_u32 s55, s55, s56")
    S("s_mul_i32 s55, s55, 14")
    S("s_add_u32 s55, s55, s53")
    S("s_lshl_b32 s55, s55, 10")
    S(f"s_add_u32 s55, s55, {WS_WINF}")
    S("v_lshlrev_b32 v17, 4, v0")
    S.wait(vm=["w"])
    S("s_barrier")
    for s in range(8):
        S.lgop(f"ds_read_b64_tr_b16 {vr(32 + 4 * s, 2)}, v12 offset:{s * 4096}", f"f{s}")
        S.lgop(f"ds_read_b64_tr_b16 {vr(34 + 4 * s, 2)}, v12 offset:{s * 4096 + 512}", f"f{s}")
    S.wait(vm=["vec"])
    for s in range(8):
        S.wait(lg=[f"f{s}"])
        S.vmop(f"buffer_store_dwordx4 {vr(32 + 4 * s, 4)}, v17, s[{R_WS}:{R_WS + 3}], s55 offen {ST}")
        S("s_add_u32 s55, s55, 14336")
        S(mfma16(20, 32 + 4 * s, 64 + 4 * s, None if s == 0 else 20))
    S("s_mul_i32 s46, s51, 28672")
    S("s_lshl_b32 s47, s52, 6")
    S("s_add_u32 s46, s46, s47")
    S(f"s_add_u32 s46, s46, {WS_C12}")
    S("s_nop 7")
    S(f"buffer_store_dwordx4 v[20:23], v16, s[{R_WS}:{R_WS + 3}], s46 offen {ST}")
    finish(S, name)
    return S


class Gemm:
    def __init__(self, **kw):
        self.tail = []
        self.lds0 = 0
        self.DIST = 3
        self.__dict__.update(kw)

    def shared_reads(self, g):
        u, n = divmod(g, self.NT)
        st, uu = divmod(u, self.UPS)
        base = self.lds0 + (st % self.NS) * self.slot
        dst = self.SH + 8 * (g % 4)
        out = []
        for k in range(2):
            if self.mode == "tr":
                a = base + (2 * uu + k) * 4096
                w, o = divmod(a, 65536)
                out.append(f"ds_read_b64_tr_b16 {vr(dst + 4 * k, 2)}, v{self.VA + 4 * w + n} offset:{o}")
                out.append(f"ds_read_b64_tr_b16 {vr(dst + 4 * k + 2, 2)}, v{self.VA + 4 * w + n} offset:{o + 512}")
            else:
                a = base + ((2 * uu + k) * self.NT + n) * 1024
                w, o = divmod(a, 65536)
                out.append(f"ds_read_b128 {vr(dst + 4 * k, 4)}, v{self.VA + w} offset:{o}")
                out.append(None)
        return out

    def priv_issue(self, S, u, x):
        a, k = divmod(x, 2)
        reg = self.PV + 16 * (u % self.PR) + 4 * x
        S.vmop(self.priv(a, k, reg), f"p{u}")
        if x == 3:
            S(self.priv_step)

    def start(self, S):
        for u in range(self.PR - 1):
            for x in range(4):
                self.priv_issue(S, u, x)

    def consumer(self, S, name=None, period=None):
        NT, NU = self.NT, self.NU
        NG = NT * NU
        gps = NT * self.UPS
        S("s_barrier")
        for g in range(self.DIST):
            for r in self.shared_reads(g):
                if r:
                    S.lgop(r, f"s{g}")
        marks = []
        tail = list(self.tail)
        for g in range(NG):
            u, n = divmod(g, NT)
            if period and g % period == 0:
                marks.append(S.mark())
            if (g + self.DIST) % gps == 0 and g + self.DIST < NG:
                S("s_barrier")
            S.wait(vm=[f"p{u}"] if n == 0 else [], lg=[f"s{g}"])
            rds = self.shared_reads(g + self.DIST) if g + self.DIST < NG else [None] * 4
            seq = [(0, 0), (0, 1), (1, 1), (1, 0)] if g % 2 == 0 else [(1, 0), (1, 1), (0, 1), (0, 0)]
            for t, (a, k) in enumerate(seq):
                d = self.acc(a, n)
                sh = self.SH + 8 * (g % 4) + 4 * k
                pv = self.PV + 16 * (u % self.PR) + 4 * (2 * a + k)
                c = None if (u == 0 and t % 2 == 0) else d
                S(mfma16(d, sh, pv, c) if self.orient(n) == "ft" else mfma16(d, pv, sh, c))
                if rds[t]:
                    S.lgop(rds[t], f"s{g + self.DIST}")
            if n in self.load_at:
                un = u + self.PR - 1
                if un < NU:
                    self.priv_issue(S, un, self.load_at.index(n))
                elif tail:
                    txt, tag = tail.pop(0)
                    S.vmop(txt, tag)
        assert not tail
        if period:
            marks.append(S.mark())
            S.fold(marks, "s63", name)

    def helper(self, S, dma, extra=None):
        nst = self.NU // self.UPS
        first = min(nst, self.NS if self.NS >= nst else self.NS - 1)
        for st in range(first):
            dma(S, st)
        if extra:
            extra(S)
        S.wait(vm=["d0"])
        S("s_barrier")
        for st in range(nst - 1):
            S.wait(vm=[f"d{st + 1}"])
            S("s_barrier")
            if first + st < nst:
                dma(S, first + st)


def al_priv(S, G, region, kbytes, voff):
    S(f"v_lshrrev_b32 v{voff}, 4, v0")
    S(f"v_lshlrev_b32 v{voff}, 9, v{voff}")
    S(f"v_and_b32 v1, 15, v0")
    S(f"v_lshl_add_u32 v{voff}, v1, 4, v{voff}")
    S(f"s_mul_i32 s50, {sTB}, {kbytes}")
    S(f"s_add_u32 s50, s50, {region}")
    G.priv = lambda a, k, reg: (f"buffer_load_dwordx4 {vr(reg, 4)}, v{voff}, s[{R_WS}:{R_WS + 3}], s50 offen "
                                f"offset:{a * 256 + k * 2048}")
    G.priv_step = "s_add_u32 s50, s50, 4096"


def tr_panel_helper(S, G, rsrc):
    tr_dma_addr(S, 4, 2048, 8, 9)
    S(f"s_lshl_b32 s50, {sW}, 16")
    S(f"s_lshl_b32 s51, {sJ}, 7")
    S("s_add_u32 s50, s50, s51")
    S(f"s_lshl_b32 s51, {sW}, 12")

    def dma(S, st):
        S(f"s_add_u32 m0, s51, {G.lds0 + (st % G.NS) * G.slot}")
        S("s_nop 0")
        for i in range(4):
            S.vmop(f"buffer_load_dwordx4 v{4 + i}, s[{rsrc}:{rsrc + 3}], s50 offen offset:{i * 1024} lds", f"d{st}")
        S(f"s_add_u32 s50, s50, {128 * 2048}")
    return dma


def lin_panel_helper(S, G, region):
    S("v_lshlrev_b32 v4, 4, v0")
    S(f"s_mul_i32 s51, {sW}, 7168")
    S(f"s_mul_i32 s50, {sJ}, 458752")
    S("s_add_u32 s50, s50, s51")
    S(f"s_add_u32 s50, s50, {region}")

    def dma(S, st):
        S(f"s_add_u32 m0, s51, {G.lds0 + (st % G.NS) * G.slot}")
        S("s_nop 0")
        for i in range(4):
            S.vmop(f"buffer_load_dwordx4 v4, s[{R_WS}:{R_WS + 3}], s50 offen offset:{i * 1024} lds", f"d{st}")
        S("s_add_u32 s50, s50, 4096")
        S("s_add_u32 m0, m0, 4096")
        S("s_nop 0")
        for i in range(3):
            S.vmop(f"buffer_load_dwordx4 v4, s[{R_WS}:{R_WS + 3}], s50 offen offset:{i * 1024} lds", f"d{st}")
        S(f"s_add_u32 s50, s50, {28672 - 4096}")
    return dma


def small_gemm(NU, NS):
    return Gemm(NT=4, NU=NU, UPS=2, NS=NS, slot=16384, mode="tr", SH=48, PV=96, PR=8, VA=4,
                acc=lambda a, n: 16 + 8 * n + 4 * a, orient=lambda n: "ft", load_at=[0, 1, 2, 3])


def role_split(S, name):
    S(f"s_cmp_ge_u32 {sW8}, 4")
    S(f"s_cbranch_scc1 {name}_helper")


KV_SLOT = [4, 0, 1, 2, 3, 0, 1, 4]


def attn_regs():
    return dict(Q=48, SA=64, SB=80, OA=96, OB=112, LA=128, LB=132, K=136, VL=144, VH=148, ONE=152, IDX=156, VA=157)


def attention(S, name):
    R = attn_regs()
    Q, K, VL, VH, ONE, IDX, VA = R["Q"], R["K"], R["VL"], R["VH"], R["ONE"], R["IDX"], R["VA"]
    Sx, Ox, Lx = [R["SA"], R["SB"]], [R["OA"], R["OB"]], [R["LA"], R["LB"]]

    def qk(h, b):
        c = "0" if b == 0 else vr(Sx[h], 16)
        return f"v_mfma_f32_32x32x16_bf16 {vr(Sx[h], 16)}, {vr(K + 4 * b, 4)}, {vr(Q + 8 * h + 4 * b, 4)}, {c}"

    def pv(h, jj):
        return f"v_smfmac_f32_32x32x32_bf16 {vr(Ox[h], 16)}, {vr(VH if jj else VL, 4)}, {vr(Sx[h] + 8 * jj, 8)}, v{IDX}"

    def sm(h, jj):
        return f"v_smfmac_f32_16x16x64_bf16 {vr(Lx[h], 4)}, {vr(ONE, 4)}, {vr(Sx[h] + 8 * jj, 8)}, v{IDX}"

    def rd(dst, off, tag):
        S.lgop(f"ds_read_b128 {vr(dst, 4)}, v{VA} offset:{off}", tag)

    for i in range(16):
        S(f"v_mov_b32 v{Ox[0] + i}, 0")
        S(f"v_mov_b32 v{Ox[1] + i}, 0")
    for i in range(4):
        S(f"v_mov_b32 v{Lx[0] + i}, 0")
        S(f"v_mov_b32 v{Lx[1] + i}, 0")
        S(f"v_mov_b32 v{VH + i}, 0")
    for i in range(8):
        S(f"v_mov_b32 v{Sx[1] + 8 + i}, 0")
    S(f"v_mov_b32 v{IDX}, 0xdddddddd")
    S("v_and_b32 v1, 7, v0")
    S("v_mov_b32 v2, 0x3f803f80")
    S("v_cmp_eq_u32 vcc, 0, v1")
    S("s_nop 1")
    S(f"v_cndmask_b32 v{ONE}, 0, v2, vcc")
    S(f"v_cndmask_b32 v{ONE + 1}, 0, v2, vcc")
    S("v_cmp_eq_u32 vcc, 4, v1")
    S("s_nop 1")
    S(f"v_cndmask_b32 v{ONE + 2}, 0, v2, vcc")
    S(f"v_cndmask_b32 v{ONE + 3}, 0, v2, vcc")
    S("v_lshlrev_b32 v3, 4, v0")
    S(f"v_add_u32 v{VA}, {KV_SLOT[0] * 32768}, v3")
    nib = sum(KV_SLOT[c] << (4 * (c - 1)) for c in range(1, 8))
    S(f"s_mov_b32 s52, {nib:#x}")
    S("s_barrier")
    rd(K, 0, "k")
    rd(K + 4, 1024, "k")
    S.wait(lg=["k"])
    S(qk(0, 0))
    S(qk(0, 1))
    rd(VL, 2048, "vl")
    S("s_nop 7")
    S("s_nop 3")
    marks = []
    for c in range(8):
        marks.append(S.mark())
        for t in range(8):
            ex = [[f"v_exp_f32 v{Sx[h] + i}, v{Sx[h] + i}" for i in range(16)] for h in range(2)]
            last = t == 7
            nxt = 0 if last else (t + 1) * 4096
            for x in ex[0][0:2]: S(x)
            S(pv(1, 1))
            rd(VH, t * 4096 + 3072, "vh")
            for x in ex[0][2:5]: S(x)
            S(sm(1, 1))
            if last:
                S("s_and_b32 s53, s52, 15")
                S("s_lshl_b32 s53, s53, 15")
                S("s_lshr_b32 s52, s52, 4")
            for x in ex[0][5:7]: S(x)
            S(qk(1, 0))
            if last:
                S("s_barrier")
                S(f"v_add_u32 v{VA}, s53, v3")
            rd(K, nxt, "k")
            for x in ex[0][7:10]: S(x)
            S(qk(1, 1))
            rd(K + 4, nxt + 1024, "k")
            for x in ex[0][10:13]: S(x)
            S.wait(lg=["vl"])
            S(pv(0, 0))
            for x in ex[0][13:16]: S(x)
            S(sm(0, 0))
            for x in ex[1][0:2]: S(x)
            S.wait(lg=["vh"])
            S(pv(0, 1))
            for x in ex[1][2:5]: S(x)
            S(sm(0, 1))
            S.wait(lg=["k"])
            for x in ex[1][5:7]: S(x)
            S(qk(0, 0))
            for x in ex[1][7:10]: S(x)
            S(qk(0, 1))
            for x in ex[1][10:13]: S(x)
            S(pv(1, 0))
            rd(VL, nxt + 2048, "vl")
            for x in ex[1][13:16]: S(x)
            S(sm(1, 0))
    marks.append(S.mark())
    n = S.fold(marks, "s63", f"{name}_aloop")
    assert n == 8, n
    S("s_nop 1")
    S(pv(1, 1))
    S(sm(1, 1))
    S.wait_all(vm=False)
    S("s_nop 15")
    S(f"v_max3_f32 v4, abs(v{Ox[0]}), abs(v{Ox[0] + 1}), 0")
    for i in range(2, 32, 2):
        S(f"v_max3_f32 v4, abs(v{Ox[0] + i}), abs(v{Ox[0] + i + 1}), v4")
    S(f"v_mov_b32 v5, {hexf(2.0 ** -20)}")
    S(f"v_mov_b32 v6, {hexf(2.0 ** 90)}")
    S(f"v_mov_b32 v7, {hexf(2.0 ** 126)}")
    S(f"v_cmp_nge_f32 s[54:55], v{Lx[0]}, v5")
    S(f"v_cmp_nle_f32 s[56:57], v{Lx[0]}, v6")
    S("s_or_b64 s[54:55], s[54:55], s[56:57]")
    S(f"v_cmp_nge_f32 s[56:57], v{Lx[1]}, v5")
    S("s_or_b64 s[54:55], s[54:55], s[56:57]")
    S(f"v_cmp_nle_f32 s[56:57], v{Lx[1]}, v6")
    S("s_or_b64 s[54:55], s[54:55], s[56:57]")
    S("v_cmp_nle_f32 s[56:57], v4, v7")
    S("s_or_b64 s[54:55], s[54:55], s[56:57]")
    S(f"v_add_f32 v4, v{Ox[0]}, v{Ox[0] + 1}")
    for i in range(2, 32):
        S(f"v_add_f32 v4, v4, v{Ox[0] + i}")
    S("v_cmp_u_f32 s[56:57], v4, v4")
    S("s_or_b64 s[54:55], s[54:55], s[56:57]")
    S(f"s_cbranch_scc1 {name}_slow")
    S.label(f"{name}_norm")
    S(f"v_rcp_f32 v4, v{Lx[0]}")
    S(f"v_rcp_f32 v6, v{Lx[1]}")
    S(f"s_lshl_b32 s50, {sTB}, 16")
    S(f"s_lshl_b32 s51, {sJ}, 12")
    S("s_add_u32 s50, s50, s51")
    S(f"s_add_u32 s50, s50, {WS_O}")
    for h in range(2):
        for i in range(0, 16, 2):
            S(f"v_pk_mul_f32 {vr(Ox[h] + i, 2)}, {vr(Ox[h] + i, 2)}, {vr(4 + 2 * h, 2)} op_sel_hi:[1,0]")
        for i in range(8):
            S(f"v_cvt_pk_bf16_f32 v{Sx[h] + i}, v{Ox[h] + 2 * i}, v{Ox[h] + 2 * i + 1}")
        for jj in range(2):
            S(f"buffer_store_dwordx4 {vr(Sx[h] + 4 * jj, 4)}, v3, s[{R_WS}:{R_WS + 3}], s50 offen "
              f"offset:{h * 2048 + jj * 1024} {ST}")


def attention_slow(S, name):
    R = attn_regs()
    Q, K, VL, VH, ONE, IDX = R["Q"], R["K"], R["VL"], R["VH"], R["ONE"], R["IDX"]
    Sx, Ox, Lx = [R["SA"], R["SB"]], [R["OA"], R["OB"]], [R["LA"], R["LB"]]
    M = [160, 176]
    S.label(f"{name}_slow")
    S("v_mov_b32 v4, 0xff800000")
    S("v_mov_b32 v5, 0xff800000")
    S(f"s_mov_b32 s50, {WS_KV}")
    S.label(f"{name}_slow1")
    S(f"buffer_load_dwordx4 {vr(K, 4)}, v3, s[{R_WS}:{R_WS + 3}], s50 offen")
    S(f"buffer_load_dwordx4 {vr(K + 4, 4)}, v3, s[{R_WS}:{R_WS + 3}], s50 offen offset:1024")
    S("s_waitcnt vmcnt(0)")
    for h in range(2):
        S(f"v_mfma_f32_32x32x16_bf16 {vr(Sx[h], 16)}, {vr(K, 4)}, {vr(Q + 8 * h, 4)}, 0")
        S(f"v_mfma_f32_32x32x16_bf16 {vr(Sx[h], 16)}, {vr(K + 4, 4)}, {vr(Q + 8 * h + 4, 4)}, {vr(Sx[h], 16)}")
    S("s_nop 15")
    for h in range(2):
        for i in range(0, 16, 2):
            S(f"v_max3_f32 v{4 + h}, v{Sx[h] + i}, v{Sx[h] + i + 1}, v{4 + h}")
    S("s_add_u32 s50, s50, 4096")
    S(f"s_cmp_lt_u32 s50, {WS_KV + 64 * 4096}")
    S(f"s_cbranch_scc1 {name}_slow1")
    for h in range(2):
        S(f"v_mov_b32 v6, v{4 + h}")
        S("s_nop 1")
        S(f"v_permlane32_swap_b32 v{4 + h}, v6")
        S(f"v_max_f32 v{4 + h}, v{4 + h}, v6")
        for i in range(16):
            S(f"v_sub_f32 v{M[h] + i}, 0, v{4 + h}")
            S(f"v_mov_b32 v{Ox[h] + i}, 0")
        for i in range(4):
            S(f"v_mov_b32 v{Lx[h] + i}, 0")
    S(f"s_mov_b32 s50, {WS_KV}")
    S.label(f"{name}_slow2")
    for i in range(4):
        S(f"buffer_load_dwordx4 {vr(K + 4 * i, 4)}, v3, s[{R_WS}:{R_WS + 3}], s50 offen offset:{i * 1024}")
    S("s_waitcnt vmcnt(0)")
    for h in range(2):
        S(f"v_mfma_f32_32x32x16_bf16 {vr(Sx[h], 16)}, {vr(K, 4)}, {vr(Q + 8 * h, 4)}, {vr(M[h], 16)}")
        S(f"v_mfma_f32_32x32x16_bf16 {vr(Sx[h], 16)}, {vr(K + 4, 4)}, {vr(Q + 8 * h + 4, 4)}, {vr(Sx[h], 16)}")
    S("s_nop 15")
    for h in range(2):
        for i in range(16):
            S(f"v_exp_f32 v{Sx[h] + i}, v{Sx[h] + i}")
    S("s_nop 1")
    for h in range(2):
        for jj in range(2):
            S(f"v_smfmac_f32_32x32x32_bf16 {vr(Ox[h], 16)}, {vr(VH if jj else VL, 4)}, {vr(Sx[h] + 8 * jj, 8)}, v{IDX}")
        for jj in range(2):
            S(f"v_smfmac_f32_16x16x64_bf16 {vr(Lx[h], 4)}, {vr(ONE, 4)}, {vr(Sx[h] + 8 * jj, 8)}, v{IDX}")
    S("s_nop 15")
    S("s_add_u32 s50, s50, 4096")
    S(f"s_cmp_lt_u32 s50, {WS_KV + 64 * 4096}")
    S(f"s_cbranch_scc1 {name}_slow2")
    S(f"s_branch {name}_norm")


def k_attn(name):
    S = Stream()
    prologue(S, name, 256)
    srd(S, R_WQ, P_WQ, 1024 * 2048)
    G = small_gemm(16, 8)
    role_split(S, name)
    al_priv(S, G, WS_H, 65536, 12)
    G.start(S)
    tr_read_addr(S, 4, 2, 13, 14)
    G.consumer(S)
    S("s_nop 7")
    Q = attn_regs()["Q"]
    S(f"s_mov_b32 s52, {hexf(32 ** -0.5 * math.log2(math.e))}")
    for i in range(0, 32, 2):
        S(f"v_pk_mul_f32 {vr(16 + i, 2)}, {vr(16 + i, 2)}, s[52:53] op_sel_hi:[1,0]")
    for i in range(16):
        S(f"v_cvt_pk_bf16_f32 v{Q + i}, v{16 + 2 * i}, v{17 + 2 * i}")
    S("s_nop 1")
    for n in range(4):
        for m in range(2):
            S(f"v_permlane16_swap_b32 v{Q + 4 * n + m}, v{Q + 4 * n + 2 + m}")
    attention(S, name)
    S("s_endpgm")
    attention_slow(S, name)
    H = Stream()
    H.label(f"{name}_helper")
    dma = tr_panel_helper(H, G, R_WQ)
    H("v_lshlrev_b32 v10, 4, v0")
    H(f"s_lshl_b32 s53, {sW}, 13")
    H(f"s_add_u32 s52, s53, {WS_KV}")

    def kv(H, c):
        for g in range(2):
            H(f"s_add_u32 m0, s53, {KV_SLOT[c] * 32768 + g * 4096}")
            H("s_nop 0")
            for i in range(4):
                H.vmop(f"buffer_load_dwordx4 v10, s[{R_WS}:{R_WS + 3}], s52 offen offset:{i * 1024} lds", f"kv{c}")
            H(f"s_add_u32 s52, s52, {4096 if g == 0 else 32768 - 4096}")
    G.helper(H, dma, extra=lambda H: kv(H, 0))
    H.wait(vm=["kv0"])
    H("s_barrier")
    for c in range(1, 5):
        kv(H, c)
    issue_after = {2: 5, 3: 6, 4: 7}
    for c in range(8):
        if c < 7:
            H.wait(vm=[f"kv{c + 1}"])
        H("s_barrier")
        if c in issue_after:
            kv(H, issue_after[c])
    S.L += H.L
    finish(S, name)
    return S


def row_addr(S, dst, t0, t1):
    S(f"v_and_b32 v{t0}, 31, v0")
    tau(S, dst, t0, t1)
    S(f"v_lshlrev_b32 v{dst}, 11, v{dst}")
    S(f"v_lshrrev_b32 v{t0}, 5, v0")
    S(f"v_lshl_add_u32 v{dst}, v{t0}, 4, v{dst}")


def swap_acc(S):
    S("s_nop 7")
    for n in range(4):
        for i in range(4):
            S(f"v_permlane16_swap_b32 v{16 + 8 * n + i}, v{20 + 8 * n + i}")


def k_wo(name):
    S = Stream()
    prologue(S, name, 256)
    srd(S, R_WO, P_WO, 1024 * 2048)
    srd(S, R_X, P_X, 2048 * 2048)
    G = small_gemm(16, 8)
    role_split(S, name)
    al_priv(S, G, WS_O, 65536, 12)
    G.start(S)
    tr_read_addr(S, 4, 2, 13, 14)
    row_addr(S, 13, 14, 15)
    S("v_lshrrev_b32 v14, 5, v0")
    S("v_lshlrev_b32 v14, 5, v14")
    S(f"s_lshl_b32 s52, {sTB}, 16")
    S(f"s_lshl_b32 s53, {sJ}, 7")
    S("s_add_u32 s52, s52, s53")
    S(f"s_lshl_b32 s53, {sJ}, 8")
    S(f"s_add_u32 s54, s53, {WS_MODF + 4 * 4096}")
    S(f"s_add_u32 s53, s53, {WS_MODF + 2 * 4096}")
    XR, GA, CB = 96, 112, 144
    for n in range(4):
        G.tail.append((f"buffer_load_dwordx4 {vr(XR + 4 * n, 4)}, v13, s[{R_X}:{R_X + 3}], s52 offen offset:{n * 32}", "e"))
    for base, sg in ((GA, "s53"), (CB, "s54")):
        for n in range(4):
            for hh in range(2):
                G.tail.append((f"buffer_load_dwordx4 {vr(base + 8 * n + 4 * hh, 4)}, v14, s[{R_WS}:{R_WS + 3}], {sg} offen "
                               f"offset:{n * 64 + hh * 16}", "e"))
    G.consumer(S)
    swap_acc(S)
    S.wait(vm=["e"])
    XF = 48
    for d in range(16):
        S(f"v_lshlrev_b32 v{XF + 2 * d}, 16, v{XR + d}")
        S(f"v_and_b32 v{XF + 2 * d + 1}, 0xffff0000, v{XR + d}")
    for d in range(16):
        S(f"v_pk_fma_f32 {vr(16 + 2 * d, 2)}, {vr(16 + 2 * d, 2)}, {vr(GA + 2 * d, 2)}, {vr(XF + 2 * d, 2)}")
    for d in range(16):
        S(f"v_pk_mul_f32 {vr(XF + 2 * d, 2)}, {vr(16 + 2 * d, 2)}, {vr(CB + 2 * d, 2)}")
    for d in range(16):
        S(f"v_cvt_pk_bf16_f32 v{XR + d}, v{XF + 2 * d}, v{XF + 2 * d + 1}")
    S("v_lshlrev_b32 v3, 4, v0")
    S(f"s_lshl_b32 s52, {sTB}, 16")
    S(f"s_lshl_b32 s53, {sJ}, 12")
    S("s_add_u32 s52, s52, s53")
    S(f"s_add_u32 s53, s52, {WS_X1R}")
    S(f"s_add_u32 s52, s52, {WS_X1P}")
    for n in range(4):
        S(f"buffer_store_dwordx4 {vr(XR + 4 * n, 4)}, v3, s[{R_WS}:{R_WS + 3}], s52 offen offset:{n * 1024} {ST}")
    for d in range(16):
        S(f"v_cvt_pk_bf16_f32 v{GA + d}, v{16 + 2 * d}, v{17 + 2 * d}")
    for n in range(4):
        S(f"buffer_store_dwordx4 {vr(GA + 4 * n, 4)}, v3, s[{R_WS}:{R_WS + 3}], s53 offen offset:{n * 1024} {ST}")
    S("v_pk_add_f32 v[4:5], v[16:17], v[18:19]")
    S("v_pk_mul_f32 v[6:7], v[16:17], v[16:17]")
    S("v_pk_fma_f32 v[6:7], v[18:19], v[18:19], v[6:7]")
    for d in range(2, 16):
        S(f"v_pk_add_f32 v[4:5], v[4:5], {vr(16 + 2 * d, 2)}")
        S(f"v_pk_fma_f32 v[6:7], {vr(16 + 2 * d, 2)}, {vr(16 + 2 * d, 2)}, v[6:7]")
    S("v_add_f32 v4, v4, v5")
    S("v_add_f32 v5, v6, v7")
    xreduce(S, 4, 6, 32)
    xreduce(S, 5, 6, 32)
    S("v_and_b32 v6, 31, v0")
    S("v_lshlrev_b32 v6, 3, v6")
    S(f"s_lshl_b32 s52, {sTB}, 12")
    S(f"s_lshl_b32 s53, {sJ}, 8")
    S("s_add_u32 s52, s52, s53")
    S(f"s_add_u32 s52, s52, {WS_ST1}")
    S(f"buffer_store_dwordx2 v[4:5], v6, s[{R_WS}:{R_WS + 3}], s52 offen {ST}")
    S("s_endpgm")
    H = Stream()
    H.label(f"{name}_helper")
    G.helper(H, tr_panel_helper(H, G, R_WO))
    S.L += H.L
    finish(S, name)
    return S


L_C12 = 114688
L_RM = L_C12 + 2048
L_RM2 = L_RM + 1024


def stats_finish(S, B, n, lds, t):
    for i in range(1, 4):
        S(f"v_pk_add_f32 {vr(B, 2)}, {vr(B, 2)}, {vr(B + 4 * i, 2)}")
        S(f"v_pk_add_f32 {vr(B + 2, 2)}, {vr(B + 2, 2)}, {vr(B + 4 * i + 2, 2)}")
    for which in (16, 32):
        for i in range(4):
            S(f"v_mov_b32 v{B + 4 + i}, v{B + i}")
        S("s_nop 0")
        for i in range(4):
            S(f"v_permlane{which}_swap_b32 v{B + i}, v{B + 4 + i}")
        for i in range(4):
            S(f"v_add_f32 v{B + i}, v{B + i}, v{B + 4 + i}")
    for i in range(4):
        S(f"v_mul_f32 v{B + i}, {hexf(1.0 / n)}, v{B + i}")
    for p in range(2):
        S(f"v_fma_f32 v{B + 2 * p + 1}, -v{B + 2 * p}, v{B + 2 * p}, v{B + 2 * p + 1}")
        S(f"v_max_f32 v{B + 2 * p + 1}, 0, v{B + 2 * p + 1}")
        S(f"v_add_f32 v{B + 2 * p + 1}, {hexf(1e-5)}, v{B + 2 * p + 1}")
    for p in range(2):
        S(f"v_rsq_f32 v{B + 4 + p}, v{B + 2 * p + 1}")
    S("s_nop 0")
    for p in range(2):
        S(f"v_mul_f32 v{B + 6 + p}, v{B + 2 * p}, v{B + 4 + p}")
        S(f"v_sub_f32 v{B + 6 + p}, 0, v{B + 6 + p}")
    S(f"v_and_b32 v{t}, 15, v0")
    S(f"v_lshlrev_b32 v{t}, 3, v{t}")
    S(f"s_lshl_b32 s54, {sW}, 8")
    S(f"s_add_u32 s54, s54, {lds}")
    S(f"v_add_u32 v{t}, s54, v{t}")
    S.lgop(f"ds_write_b64 v{t}, {vr(B + 4, 2)}", "rm")
    S.lgop(f"ds_write_b64 v{t}, {vr(B + 6, 2)} offset:128", "rm")


def gelu_block(S, xs, T):
    for i, x in enumerate(xs):
        S(f"v_pk_mul_f32 {vr(T + 2 * i, 2)}, {vr(x, 2)}, {vr(x, 2)}")
    for i, x in enumerate(xs):
        S(f"v_pk_fma_f32 {vr(T + 2 * i, 2)}, {vr(T + 2 * i, 2)}, s[56:57], v[14:15]")
    for i, x in enumerate(xs):
        S(f"v_pk_mul_f32 {vr(T + 2 * i, 2)}, {vr(T + 2 * i, 2)}, {vr(x, 2)}")
    for i in range(2 * len(xs)):
        S(f"v_exp_f32 v{T + i}, v{T + i}")
    for i, x in enumerate(xs):
        S(f"v_pk_add_f32 {vr(T + 2 * i, 2)}, {vr(T + 2 * i, 2)}, 1.0 op_sel_hi:[1,0]")
    for i in range(2 * len(xs)):
        S(f"v_rcp_f32 v{T + i}, v{T + i}")
    for i, x in enumerate(xs):
        S(f"v_pk_mul_f32 {vr(x, 2)}, {vr(x, 2)}, {vr(T + 2 * i, 2)}")


def k_win(name):
    S = Stream()
    prologue(S, name, 256)
    ACC = 16
    G = Gemm(NT=14, NU=16, UPS=1, NS=4, slot=28672, mode="lin", SH=128, PV=160, PR=4, VA=4,
             acc=lambda a, n: ACC + 8 * n + 4 * a, orient=lambda n: "ft" if n < 7 else "tf", load_at=[5, 6, 7, 8])
    role_split(S, name)
    al_priv(S, G, WS_X1P, 65536, 12)
    G.start(S)
    S("v_lshlrev_b32 v4, 4, v0")
    S("v_add_u32 v5, 65536, v4")
    G.consumer(S, f"{name}_loop", 56)
    k0 = -2.0 * math.sqrt(2.0 / math.pi) * math.log2(math.e)
    S(f"v_mov_b32 v14, {hexf(k0)}")
    S(f"v_mov_b32 v15, {hexf(k0)}")
    S(f"s_mov_b32 s56, {hexf(k0 * 0.044715)}")
    S(f"s_mov_b32 s57, {hexf(k0 * 0.044715)}")
    S("v_and_b32 v6, 15, v0")
    S("v_lshrrev_b32 v7, 4, v0")
    S(f"s_lshl_b32 s54, {sW}, 8")
    S(f"s_add_u32 s54, s54, {L_RM}")
    S("v_lshlrev_b32 v8, 4, v7")
    S("v_add_u32 v9, s54, v8")
    S(f"v_add_u32 v8, {L_C12}, v8")
    S("v_lshlrev_b32 v10, 2, v6")
    S("v_add_u32 v11, s54, v10")
    S(f"v_add_u32 v10, {L_C12 + 448}, v10")
    RV, MV, CS, RM, T, SUM, SQ, CV = 128, 136, 144, 158, 164, 180, 188, 196
    for a in range(2):
        S.lgop(f"ds_read_b128 {vr(RV + 4 * a, 4)}, v9 offset:{a * 64}", "e2")
        S.lgop(f"ds_read_b128 {vr(MV + 4 * a, 4)}, v9 offset:{128 + a * 64}", "e2")
    for n in range(7):
        S.lgop(f"ds_read_b32 v{CS + 2 * n}, v10 offset:{n * 64}", "e2")
        S.lgop(f"ds_read_b32 v{CS + 2 * n + 1}, v10 offset:{896 + n * 64}", "e2")
    S.wait(lg=["e2"])
    for a in range(2):
        S.lgop(f"ds_read_b32 v{RM + 2 * a}, v11 offset:{a * 64}", "e1")
        S.lgop(f"ds_read_b32 v{RM + 2 * a + 1}, v11 offset:{128 + a * 64}", "e1")
    for n in range(7):
        S.lgop(f"ds_read_b128 {vr(CV + 8 * n, 4)}, v8 offset:{n * 64}", "e1")
        S.lgop(f"ds_read_b128 {vr(CV + 8 * n + 4, 4)}, v8 offset:{896 + n * 64}", "e1")
    for n in range(7):
        xs = [ACC + 8 * (7 + n) + 2 * p for p in range(4)]
        for p in range(4):
            S(f"v_pk_fma_f32 {vr(T + 2 * p, 2)}, {vr(MV + 2 * p, 2)}, {vr(CS + 2 * n, 2)}, {vr(CS + 2 * n, 2)} "
              f"op_sel:[0,0,1] op_sel_hi:[1,0,1]")
        for p in range(4):
            S(f"v_pk_fma_f32 {vr(xs[p], 2)}, {vr(xs[p], 2)}, {vr(RV + 2 * p, 2)}, {vr(T + 2 * p, 2)}")
        gelu_block(S, xs, T)
        for p in range(4):
            if n == 0:
                S(f"v_pk_mul_f32 {vr(SQ + 2 * p, 2)}, {vr(xs[p], 2)}, {vr(xs[p], 2)}")
            else:
                S(f"v_pk_fma_f32 {vr(SQ + 2 * p, 2)}, {vr(xs[p], 2)}, {vr(xs[p], 2)}, {vr(SQ + 2 * p, 2)}")
            if n == 1:
                S(f"v_pk_add_f32 {vr(SUM + 2 * p, 2)}, {vr(xs[p] - 8, 2)}, {vr(xs[p], 2)}")
            elif n > 1:
                S(f"v_pk_add_f32 {vr(SUM + 2 * p, 2)}, {vr(SUM + 2 * p, 2)}, {vr(xs[p], 2)}")
    S("s_nop 1")
    dp = "row_mask:0xf"
    for i in range(4):
        for st, src in enumerate((SUM, SQ)):
            S(f"v_add_f32_dpp v{T + 2 * i + st}, v{src + i}, v{src + i} row_ror:8 {dp} bank_mask:0xf")
    for i in range(4):
        for st, src in enumerate((SUM, SQ)):
            S(f"v_add_f32_dpp v{T + 2 * i + st}, v{src + 4 + i}, v{src + 4 + i} row_ror:8 {dp} bank_mask:0xc")
    S("s_nop 1")
    for m in range(4):
        S(f"v_add_f32_dpp v{T + 8 + m}, v{T + m}, v{T + m} row_half_mirror {dp} bank_mask:0xf")
    for m in range(4):
        S(f"v_add_f32_dpp v{T + 8 + m}, v{T + 4 + m}, v{T + 4 + m} row_half_mirror {dp} bank_mask:0xa")
    S("s_nop 1")
    for m in range(4):
        S(f"v_add_f32_dpp v{T + m}, v{T + 8 + m}, v{T + 8 + m} quad_perm:[1,0,3,2] {dp} bank_mask:0xf")
    S("s_nop 1")
    for m in range(4):
        S(f"v_add_f32_dpp v{T + 8 + m}, v{T + m}, v{T + m} quad_perm:[2,3,0,1] {dp} bank_mask:0xf")
    S("v_lshrrev_b32 v12, 2, v0")
    S("v_lshlrev_b32 v12, 4, v12")
    S("v_and_b32 v13, 3, v0")
    S("v_cmp_eq_u32 vcc, 0, v13")
    S(f"v_mov_b32 v13, {OOB}")
    S(f"s_lshl_b32 s52, {sTB}, 12")
    S(f"s_add_u32 s52, s52, {WS_ST2}")
    S("v_cndmask_b32 v12, v13, v12, vcc")
    S(f"s_lshl_b32 s53, {sJ}, 8")
    S("s_add_u32 s53, s53, s52")
    S(f"buffer_store_dwordx4 {vr(T + 8, 4)}, v12, s[{R_WS}:{R_WS + 3}], s53 offen sc1")
    S.wait(lg=["e1"])
    for n in range(7):
        xs = [ACC + 8 * n + 2 * p for p in range(4)]
        for p in range(4):
            a, hh = divmod(p, 2)
            S(f"v_pk_fma_f32 {vr(T + 2 * p, 2)}, {vr(RM + 2 * a, 2)}, {vr(CV + 8 * n + 2 * hh, 2)}, "
              f"{vr(CV + 8 * n + 4 + 2 * hh, 2)} op_sel:[1,0,0] op_sel_hi:[1,1,1]")
        for p in range(4):
            a = p // 2
            S(f"v_pk_fma_f32 {vr(xs[p], 2)}, {vr(xs[p], 2)}, {vr(RM + 2 * a, 2)}, {vr(T + 2 * p, 2)} op_sel_hi:[1,0,1]")
        gelu_block(S, xs, T)
        for p in range(4):
            S(f"v_cvt_pk_bf16_f32 v{CV + 8 * n + p}, v{xs[p]}, v{xs[p] + 1}")
    S("s_mul_i32 s53, s2, 28672")
    S(f"s_mul_i32 s54, {sW}, 7168")
    S("s_add_u32 s53, s53, s54")
    S(f"s_add_u32 s53, s53, {WS_Z1}")
    for n in range(7):
        if n == 4:
            S("s_add_u32 s53, s53, 4096")
        S(f"buffer_store_dwordx4 {vr(CV + 8 * n, 4)}, v4, s[{R_WS}:{R_WS + 3}], s53 offen offset:{(n % 4) * 1024} {ST}")
    S("v_lshlrev_b32 v12, 10, v7")
    S("v_lshl_add_u32 v12, v6, 4, v12")
    S("s_mov_b32 s55, 0x40000")
    S.label(f"{name}_poll")
    for i in range(4):
        S(f"buffer_load_dwordx4 {vr(RV + 4 * i, 4)}, v12, s[{R_WS}:{R_WS + 3}], s52 offen offset:{i * 256} sc1")
    S("s_waitcnt vmcnt(0)")
    S(f"v_max3_u32 v13, v{RV}, v{RV + 1}, v{RV + 2}")
    for i in range(3, 15, 2):
        S(f"v_max3_u32 v13, v13, v{RV + i}, v{RV + i + 1}")
    S(f"v_max_u32 v13, v13, v{RV + 15}")
    S("v_cmp_eq_u32 vcc, -1, v13")
    S("s_sub_u32 s55, s55, 1")
    S("s_cmp_eq_u32 s55, 0")
    S(f"s_cbranch_scc1 {name}_got")
    S("s_nop 1")
    S(f"s_cbranch_vccnz {name}_poll")
    S.label(f"{name}_got")
    S.vm = []
    stats_finish(S, RV, 1792, L_RM2, 13)
    S(f"s_lshl_b32 s54, {sW}, 8")
    S(f"s_add_u32 s54, s54, {L_RM2}")
    S("v_lshlrev_b32 v9, 5, v7")
    S("v_add_u32 v9, s54, v9")
    S.wait(lg=["rm"])
    for a in range(2):
        S.lgop(f"ds_read_b128 {vr(RV + 4 * a, 4)}, v9 offset:{a * 16}", "e3")
        S.lgop(f"ds_read_b128 {vr(MV + 4 * a, 4)}, v9 offset:{128 + a * 16}", "e3")
    S(f"s_lshl_b32 s53, {sJ}, 6")
    S(f"s_add_u32 s53, s53, {sTB}")
    S("s_mul_i32 s53, s53, 7168")
    S(f"s_add_u32 s53, s53, {WS_Z2T}")
    S.wait(lg=["e3"])
    for n in range(7):
        b = ACC + 8 * (7 + n)
        for p in range(4):
            S(f"v_pk_fma_f32 {vr(b + 2 * p, 2)}, {vr(b + 2 * p, 2)}, {vr(RV + 2 * p, 2)}, {vr(MV + 2 * p, 2)}")
        for p in range(4):
            S(f"v_cvt_pk_bf16_f32 v{ACC + 4 * n + p}, v{b + 2 * p}, v{b + 2 * p + 1}")
        if n == 4:
            S("s_add_u32 s53, s53, 4096")
        S(f"buffer_store_dwordx4 {vr(ACC + 4 * n, 4)}, v4, s[{R_WS}:{R_WS + 3}], s53 offen offset:{(n % 4) * 1024} {ST}")
    S("s_endpgm")
    H = Stream()
    H.label(f"{name}_helper")
    dma = lin_panel_helper(H, G, WS_WINF)

    def extra(H):
        H("v_and_b32 v6, 15, v0")
        H("v_lshrrev_b32 v7, 4, v0")
        H("v_lshlrev_b32 v12, 10, v7")
        H("v_lshl_add_u32 v12, v6, 4, v12")
        H(f"s_lshl_b32 s52, {sTB}, 12")
        H(f"s_add_u32 s52, s52, {WS_ST1}")
        for i in range(4):
            H.vmop(f"buffer_load_dwordx4 {vr(16 + 4 * i, 4)}, v12, s[{R_WS}:{R_WS + 3}], s52 offen offset:{i * 256}", "st")
        H(f"s_lshr_b32 s52, {sW}, 1")
        H(f"s_and_b32 s53, {sW}, 1")
        H("s_mul_i32 s54, s52, 14336")
        H("s_mul_i32 s55, s53, 7168")
        H("s_add_u32 s54, s54, s55")
        H(f"s_mul_i32 s55, {sJ}, 448")
        H("s_add_u32 s54, s54, s55")
        H(f"s_add_u32 s54, s54, {WS_C12}")
        for ks in range(4):
            H.vmop(f"buffer_load_dwordx4 {vr(32 + 4 * ks, 4)}, v4, s[{R_WS}:{R_WS + 3}], s54 offen", "c12")
            H("s_add_u32 s54, s54, 28672")
        H.wait(vm=["st"])
        stats_finish(H, 16, 1024, L_RM, 13)
        H.wait(vm=["c12"])
        for ks in range(1, 4):
            H(f"v_pk_add_f32 v[32:33], v[32:33], {vr(32 + 4 * ks, 2)}")
            H(f"v_pk_add_f32 v[34:35], v[34:35], {vr(34 + 4 * ks, 2)}")
        H(f"s_mul_i32 s54, {sW}, 448")
        H(f"s_add_u32 s54, s54, {L_C12}")
        H("v_add_u32 v13, s54, v4")
        H("v_cmp_gt_u32 vcc, 28, v0")
        H("s_and_saveexec_b64 s[58:59], vcc")
        H("ds_write_b128 v13, v[32:35]")
        H("s_mov_b64 exec, s[58:59]")
        H.wait_all(vm=False)
    G.helper(H, dma, extra)
    S.L += H.L
    finish(S, name)
    return S


def k_g(name):
    S = Stream()
    prologue(S, name, 256)
    srd(S, R_WSP, P_WSP, 2048 * 4096)
    srd(S, R_AUX, P_BSP, 4096)
    ACC = 16
    G = Gemm(NT=7, NU=32, UPS=2, NS=4, slot=28672, mode="lin", SH=128, PV=160, PR=4, VA=4,
             acc=lambda a, n: ACC + 8 * n + 4 * a, orient=lambda n: "ft", load_at=[0, 2, 4, 6])
    role_split(S, name)
    S("v_and_b32 v6, 15, v0")
    S("v_lshrrev_b32 v7, 4, v0")
    tau(S, 8, 6, 9)
    S("v_lshlrev_b32 v12, 12, v8")
    S("v_lshl_add_u32 v12, v7, 4, v12")
    S("v_add_u32 v13, 16384, v12")
    S(f"s_lshl_b32 s50, {sTB}, 17")
    G.priv = lambda a, k, reg: f"buffer_load_dwordx4 {vr(reg, 4)}, v{12 + a}, s[{R_WSP}:{R_WSP + 3}], s50 offen offset:{k * 64}"
    G.priv_step = "s_add_u32 s50, s50, 128"
    S("v_lshlrev_b32 v4, 4, v0")
    S("v_add_u32 v5, 65536, v4")
    Z1 = 72
    S("v_lshlrev_b32 v8, 1, v8")
    S(f"s_lshl_b32 s52, {sTB}, 6")
    for a in range(2):
        S.vmop(f"buffer_load_ushort v{10 + a}, v8, s[{R_AUX}:{R_AUX + 3}], s52 offen offset:{a * 8}", "e")
    S("s_mul_i32 s53, s2, 28672")
    S(f"s_mul_i32 s54, {sW}, 7168")
    S("s_add_u32 s53, s53, s54")
    S(f"s_add_u32 s53, s53, {WS_Z1}")
    for n in range(7):
        if n == 4:
            S("s_add_u32 s53, s53, 4096")
        S.vmop(f"buffer_load_dwordx4 {vr(Z1 + 4 * n, 4)}, v4, s[{R_WS}:{R_WS + 3}], s53 offen offset:{(n % 4) * 1024}", "e")
    G.start(S)
    G.consumer(S, f"{name}_loop", 56)
    S("v_lshlrev_b32 v10, 16, v10")
    S("v_lshlrev_b32 v11, 16, v11")
    S(f"s_mul_i32 s52, {sTB}, {1792 * 64}")
    S(f"s_mul_i32 s53, {sJ}, 7168")
    S("s_add_u32 s52, s52, s53")
    S(f"s_add_u32 s52, s52, {WS_U}")
    S("s_nop 3")
    T = 128
    for n in range(7):
        for p in range(4):
            S(f"v_lshlrev_b32 v{T + 2 * p}, 16, v{Z1 + 4 * n + p}")
            S(f"v_and_b32 v{T + 2 * p + 1}, 0xffff0000, v{Z1 + 4 * n + p}")
        for p in range(4):
            a = p // 2
            x = ACC + 8 * n + 2 * p
            S(f"v_pk_add_f32 {vr(x, 2)}, {vr(x, 2)}, v[10:11] op_sel:[0,{a}] op_sel_hi:[1,{a}]")
        for p in range(4):
            x = ACC + 8 * n + 2 * p
            S(f"v_pk_mul_f32 {vr(x, 2)}, {vr(x, 2)}, {vr(T + 2 * p, 2)}")
        for p in range(4):
            x = ACC + 8 * n + 2 * p
            S(f"v_cvt_pk_bf16_f32 v{Z1 + 4 * n + p}, v{x}, v{x + 1}")
        S("s_nop 1")
        for m in range(2):
            S(f"v_permlane16_swap_b32 v{Z1 + 4 * n + m}, v{Z1 + 4 * n + 2 + m}")
        if n == 4:
            S("s_add_u32 s52, s52, 4096")
        S(f"buffer_store_dwordx4 {vr(Z1 + 4 * n, 4)}, v4, s[{R_WS}:{R_WS + 3}], s52 offen offset:{(n % 4) * 1024} {ST}")
    S("s_endpgm")
    H = Stream()
    H.label(f"{name}_helper")
    G.helper(H, lin_panel_helper(H, G, WS_Z2T))
    S.L += H.L
    finish(S, name)
    return S


def k_wout(name):
    S = Stream()
    prologue(S, name, 256)
    srd(S, R_WOUT, P_WOUT, 1792 * 2048)
    srd(S, R_OUT, P_OUT, 2048 * 2048)
    G = small_gemm(28, 8)
    role_split(S, name)
    al_priv(S, G, WS_U, 1792 * 64, 12)
    G.start(S)
    tr_read_addr(S, 4, 2, 13, 14)
    row_addr(S, 13, 14, 15)
    S("v_lshrrev_b32 v14, 5, v0")
    S("v_lshlrev_b32 v14, 5, v14")
    S("v_lshlrev_b32 v3, 4, v0")
    S(f"s_lshl_b32 s52, {sTB}, 16")
    S(f"s_lshl_b32 s53, {sJ}, 12")
    S("s_add_u32 s53, s52, s53")
    S(f"s_add_u32 s53, s53, {WS_X1R}")
    S(f"s_lshl_b32 s54, {sJ}, 7")
    S("s_add_u32 s52, s52, s54")
    S(f"s_lshl_b32 s54, {sJ}, 8")
    S(f"s_add_u32 s54, s54, {WS_MODF + 5 * 4096}")
    XR, GB = 96 + 16 * 4, 96 + 16 * 5
    for n in range(4):
        G.tail.append((f"buffer_load_dwordx4 {vr(XR + 4 * n, 4)}, v3, s[{R_WS}:{R_WS + 3}], s53 offen offset:{n * 1024}", "e"))
    for n in range(4):
        for hh in range(2):
            G.tail.append((f"buffer_load_dwordx4 {vr(GB + 8 * n + 4 * hh, 4)}, v14, s[{R_WS}:{R_WS + 3}], s54 offen "
                           f"offset:{n * 64 + hh * 16}", "e"))
    G.consumer(S)
    swap_acc(S)
    S.wait(vm=["e"])
    XF = 48
    for d in range(16):
        S(f"v_lshlrev_b32 v{XF + 2 * d}, 16, v{XR + d}")
        S(f"v_and_b32 v{XF + 2 * d + 1}, 0xffff0000, v{XR + d}")
    for d in range(16):
        S(f"v_pk_fma_f32 {vr(16 + 2 * d, 2)}, {vr(16 + 2 * d, 2)}, {vr(GB + 2 * d, 2)}, {vr(XF + 2 * d, 2)}")
    for d in range(16):
        S(f"v_cvt_pk_bf16_f32 v{XR + d}, v{16 + 2 * d}, v{17 + 2 * d}")
    for n in range(4):
        S(f"buffer_store_dwordx4 {vr(XR + 4 * n, 4)}, v13, s[{R_OUT}:{R_OUT + 3}], s52 offen offset:{n * 32}")
    S("s_endpgm")
    H = Stream()
    H.label(f"{name}_helper")
    G.helper(H, tr_panel_helper(H, G, R_WOUT))
    S.L += H.L
    finish(S, name)
    return S


KERNELS = [
    ("mod_kernel", k_mod, 384, 512, 2048, 64),
    ("ln1_kernel", k_ln1, 256, 512, 65536 + 8192 + 1024 + 16384, 256),
    ("pw_kernel", k_pw, 224, 256, 32768, 128),
    ("attn_kernel", k_attn, 256, 512, 163840, 256),
    ("wo_kernel", k_wo, 256, 512, 131072, 256),
    ("win_kernel", k_win, 256, 512, 114688 + 4096, 256),
    ("g_kernel", k_g, 256, 512, 114688, 256),
    ("wout_kernel", k_wout, 256, 512, 131072, 256),
]


def build():
    ref = open(f"cdna_kernels/{NAME}.s.ref").read().split("\n")
    head = [l for l in ref if l.startswith(";") and "@launch" not in l and "Override" not in l and "Harness parses" not in l]
    out = "\n".join(head) + "\n"
    for name, _, grid, block, lds, _ in KERNELS:
        out += f"; @launch kernel={name} grid=({grid},1,1) block=({block},1,1) lds={lds}\n"
    out += '.amdgcn_target "amdgcn-amd-amdhsa--gfx950"\n.text\n'
    for name, fn, *_ in KERNELS:
        out += fn(name).text()
    out += '.section .rodata,"a"\n'
    for name, _, _, _, _, nv in KERNELS:
        out += ".p2align 6\n" + descriptor(name, nv)
    return out


if __name__ == "__main__":
    path = sys.argv[1] if len(sys.argv) > 1 else f"cdna_kernels/{NAME}.s"
    open(path, "w").write(build())
```
